```python
import torch

def _softmax(x, axis=-1):
    return torch.softmax(x, dim=axis)
def _gelu(x):
    return torch.nn.functional.gelu(x, approximate="tanh")
def _silu(x):
    return torch.nn.functional.silu(x)
def _sigmoid(x):
    return torch.sigmoid(x)
def _layernorm(x, axis=-1, eps=1e-5):
    m = x.mean(dim=axis, keepdim=True)
    v = x.var(dim=axis, keepdim=True, unbiased=False)
    return (x - m) / torch.sqrt(v + eps)
def _scatter_add(tgt, idx, src, axis=0):
    return tgt.clone().index_add_(axis, idx, src)
def _segment_sum(src, seg, n):
    out = torch.zeros((n,) + src.shape[1:], dtype=src.dtype)
    return out.index_add_(0, seg, src)
def _pad(x, pw):
    flat = tuple(v for pair in reversed(pw) for v in pair)
    return torch.nn.functional.pad(x, flat)

kernel_name = 'concat_heads__mha_block_cached__sliding_block_cached__decode'

def setup_inputs():

    _w = (lambda a: (lambda t: t.to(torch.bfloat16) if t.is_floating_point() else t)(torch.as_tensor(a)))
    def _A_setup():
        B, Sq, D = 2, 1, 640
        H, Sk, Dh = 32, 4096, 192
        return {
            "x": _w((lambda *s: torch.randn(*s, dtype=torch.bfloat16) * 0.4)(B, Sq, D)),
            "k_cache": _w((lambda *s: torch.randn(*s, dtype=torch.bfloat16) * 3.2)(B, H, Sk, Dh)),
            "v_cache": _w((lambda *s: torch.randn(*s, dtype=torch.bfloat16) * 0.8)(B, H, Sk, Dh)),
            "wq": _w((lambda *s: torch.randn(*s, dtype=torch.bfloat16) * 3.2)(D, H * Dh) * (D ** -0.5)),
            "wo": _w((lambda *s: torch.randn(*s, dtype=torch.bfloat16) * 0.8)(H * Dh, D) * ((H * Dh) ** -0.5)),
        }
    _A_in = _A_setup()

    def _B_setup():
        B, Sq, D = 2, 1, 640
        Hq, Hkv, Sk, Dh = 32, 32, 4096, 192
        assert Hq % Hkv == 0, (Hq, Hkv)
        return {
            "x": _w((lambda *s: torch.randn(*s, dtype=torch.bfloat16) * 0.2)(B, Sq, D)),
            "k_cache": _w((lambda *s: torch.randn(*s, dtype=torch.bfloat16) * 3.2)(B, Hkv, Sk, Dh)),
            "v_cache": _w((lambda *s: torch.randn(*s, dtype=torch.bfloat16) * 1.6)(B, Hkv, Sk, Dh)),
            "wq": _w((lambda *s: torch.randn(*s, dtype=torch.bfloat16) * 3.2)(D, Hq * Dh) * (D ** -0.5)),
            "wo": _w((lambda *s: torch.randn(*s, dtype=torch.bfloat16) * 1.6)(Hq * Dh, D) * ((Hq * Dh) ** -0.5)),
        }
    _B_in = _B_setup()

    return {
        "A_x": _A_in["x"],
        "A_k_cache": _A_in["k_cache"],
        "A_v_cache": _A_in["v_cache"],
        "A_wq": _A_in["wq"],
        "A_wo": _A_in["wo"],
        "B_x": _B_in["x"],
        "B_k_cache": _B_in["k_cache"],
        "B_v_cache": _B_in["v_cache"],
        "B_wq": _B_in["wq"],
        "B_wo": _B_in["wo"],
    }

def reference(A_x, A_k_cache, A_v_cache, A_wq, A_wo, B_x, B_k_cache, B_v_cache, B_wq, B_wo):
    def _A_ref(x, k_cache, v_cache, wq, wo):
        B, Sq, D = x.shape
        H, Dh = 32, 192
        q = (lambda x, *d: x.permute(*d))((x @ wq).reshape(B, Sq, H, Dh), 0, 2, 1, 3)
        scores = torch.einsum("bhqd,bhkd->bhqk", q, k_cache) * (Dh ** -0.5)
        p = _softmax(scores, axis=-1)
        o = torch.einsum("bhqk,bhkd->bhqd", p, v_cache)
        return (lambda x, *d: x.permute(*d))(o, 0, 2, 1, 3).reshape(B, Sq, H * Dh) @ wo

    def _B_ref(x, k_cache, v_cache, wq, wo):
        B, Sq, D = x.shape
        Hq, Dh = 32, 192
        Hkv, Sk = k_cache.shape[1], k_cache.shape[2]
        W = min(4096, max(256, Sk // 4))
        rep = Hq // Hkv
        q = (lambda x, *d: x.permute(*d))((x @ wq).reshape(B, Sq, Hq, Dh), 0, 2, 1, 3)
        k = (lambda x, n, axis: torch.repeat_interleave(x, n, dim=axis))(k_cache[:, :, Sk - W:, :], rep, axis=1)
        v = (lambda x, n, axis: torch.repeat_interleave(x, n, dim=axis))(v_cache[:, :, Sk - W:, :], rep, axis=1)
        scores = torch.einsum("bhqd,bhkd->bhqk", q, k) * (Dh ** -0.5)
        p = _softmax(scores, axis=-1)
        o = torch.einsum("bhqk,bhkd->bhqd", p, v)
        return (lambda x, *d: x.permute(*d))(o, 0, 2, 1, 3).reshape(B, Sq, Hq * Dh) @ wo

    a = _A_ref(A_x, A_k_cache, A_v_cache, A_wq, A_wo)
    b = _B_ref(B_x, B_k_cache, B_v_cache, B_wq, B_wo)
    return torch.concatenate([a, b], axis=-1)
```

```python
import re

TRANS = ("v_exp_f32", "v_log_f32", "v_rcp_f32", "v_rsq_f32", "v_sqrt_f32", "v_sin_f32", "v_cos_f32", "v_rcp_iflag_f32")

def _regs(tok, kind):
    tok = tok.strip()
    neg = tok.lstrip("-").replace("abs(", "").replace(")", "").replace("|", "")
    m = re.fullmatch(kind + r"(\d+)", neg)
    if m:
        return [int(m.group(1))]
    m = re.fullmatch(kind + r"\[(\d+):(\d+)\]", neg)
    if m:
        return list(range(int(m.group(1)), int(m.group(2)) + 1))
    return []

def split_ops(s):
    out, depth, cur = [], 0, ""
    for ch in s:
        if ch == "[":
            depth += 1
        elif ch == "]":
            depth -= 1
        if ch == "," and depth == 0:
            out.append(cur.strip()); cur = ""
        else:
            cur += ch
    if cur.strip():
        out.append(cur.strip())
    return out

class Ins:
    __slots__ = ("text", "op", "cls", "vdst", "vsrc", "sdst", "ssrc", "dpp", "wide_store_data", "srcc", "nop", "srcab")
    def __init__(self, text):
        self.text = text
        t = text.split(";")[0].strip()
        parts = t.split(None, 1)
        self.op = parts[0]
        rest = parts[1] if len(parts) > 1 else ""
        op = self.op
        self.dpp = ("_dpp" in op) or bool(re.search(r"quad_perm|row_|wave_", rest))
        ops = split_ops(rest)
        if ops:
            last = ops[-1].split()
            ops[-1] = last[0] if last else ""
        self.vdst, self.vsrc, self.sdst, self.ssrc = [], [], [], []
        self.wide_store_data = []
        self.srcc = []
        self.srcab = []
        self.nop = 0
        def V(tok): return _regs(tok, "v")
        def S(tok):
            tok = tok.strip()
            if tok == "vcc": return [106, 107]
            if tok == "vcc_lo": return [106]
            if tok == "vcc_hi": return [107]
            if tok == "exec": return [126, 127]
            if tok == "m0": return [124]
            return _regs(tok, "s")
        if op == "s_nop":
            self.cls = "nop"; self.nop = int(ops[0], 0) + 1
        elif op.startswith("v_mfma"):
            self.cls = "mfma"
            self.vdst = V(ops[0]); self.srcab = V(ops[1]) + V(ops[2]); self.srcc = V(ops[3])
            self.vsrc = self.srcab + self.srcc
        elif op.startswith("v_"):
            self.cls = "valu"
            base = op.replace("_e32", "").replace("_e64", "").replace("_dpp", "")
            if base.startswith("v_cmp"):
                self.sdst = S(ops[0])
                for o in ops[1:]:
                    self.vsrc += V(o); self.ssrc += S(o)
            elif base in ("v_readfirstlane_b32", "v_readlane_b32"):
                self.sdst = S(ops[0])
                for o in ops[1:]:
                    self.vsrc += V(o); self.ssrc += S(o)
            elif base.startswith("v_permlane") and "swap" in base:
                self.vdst = V(ops[0]) + V(ops[1]); self.vsrc = list(self.vdst)
            else:
                self.vdst = V(ops[0])
                k = 1
                if base in ("v_add_co_u32", "v_sub_co_u32", "v_addc_co_u32", "v_subb_co_u32", "v_subrev_co_u32"):
                    self.sdst = S(ops[1]); k = 2
                for o in ops[k:]:
                    self.vsrc += V(o); self.ssrc += S(o)
                if base in ("v_dot2c_f32_bf16", "v_fmac_f32", "v_dot2c_f32_f16", "v_pk_fmac_f16") or self.dpp:
                    self.vsrc += self.vdst
                if base == "v_cndmask_b32" and len(ops) == 3:
                    self.ssrc += [106, 107]
                if base.startswith("v_dot2"):
                    self.srcab = V(ops[1]) + V(ops[2])
                    self.srcc = V(ops[3]) if len(ops) > 3 else list(self.vdst)
        elif op.startswith("buffer_") or op.startswith("global_"):
            self.cls = "vmem"
            if op in ("buffer_wbl2", "buffer_inv"):
                pass
            elif op.startswith("buffer_"):
                lds = " lds" in t
                if "load" in op and not lds:
                    self.vdst = V(ops[0]); rest_ops = ops[1:]
                elif lds:
                    rest_ops = ops
                else:
                    self.vsrc += V(ops[0]); rest_ops = ops[1:]
                    if "x3" in op or "x4" in op:
                        self.wide_store_data = V(ops[0])
                    if "atomic" in op and "sc0" in t:
                        self.vdst = V(ops[0])
                for o in rest_ops:
                    self.vsrc += V(o); self.ssrc += S(o)
            else:
                if "load" in op:
                    self.vdst = V(ops[0])
                    for o in ops[1:]:
                        self.vsrc += V(o); self.ssrc += S(o)
                else:
                    for o in ops:
                        self.vsrc += V(o); self.ssrc += S(o)
                    if "x3" in op or "x4" in op:
                        self.wide_store_data = V(ops[1])
        elif op.startswith("ds_"):
            self.cls = "ds"
            if "read" in op or "permute" in op or "swizzle" in op:
                self.vdst = V(ops[0])
                for o in ops[1:]:
                    self.vsrc += V(o)
            else:
                for o in ops:
                    self.vsrc += V(o)
        elif op.startswith("s_"):
            self.cls = "salu"
            if ops and not op.startswith(("s_cmp", "s_cbranch", "s_branch", "s_waitcnt", "s_barrier", "s_endpgm", "s_sleep", "s_setprio")):
                self.sdst = S(ops[0])
                for o in ops[1:]:
                    self.ssrc += S(o)
        else:
            raise ValueError("unknown instr " + text)

def mfma_passes(op):
    if "16x16x32" in op or "16x16x16" in op: return 4
    if "32x32x16" in op or "32x32x8" in op: return 8
    raise ValueError(op)

def required(prod, cons):
    need = 0
    pv = set(prod.vdst)
    cread = set(cons.vsrc)
    cwrite = set(cons.vdst)
    pbase = prod.op.replace("_e32", "").replace("_e64", "").replace("_dpp", "")
    cbase = cons.op.replace("_e32", "").replace("_e64", "").replace("_dpp", "")
    if prod.cls == "valu":
        isdot = pbase.startswith("v_dot")
        if pv & cread:
            if cons.cls == "valu" and cons.dpp: need = max(need, 2)
            if cons.cls == "valu" and cbase.startswith("v_permlane"): need = max(need, 2)
            if cons.cls == "valu" and cbase in ("v_readlane_b32", "v_readfirstlane_b32"): need = max(need, 1)
            if pbase in TRANS and cons.cls == "valu" and cbase not in TRANS: need = max(need, 1)
            if pbase in TRANS and cons.cls != "valu": need = max(need, 1)
            if cons.cls == "mfma": need = max(need, 2)
        if isdot and (pv & (cread | cwrite)):
            if cbase == pbase and not (pv & set(cons.srcab)):
                pass
            else:
                need = max(need, 3)
        ps = set(prod.sdst)
        if ps & set(cons.ssrc):
            if cons.cls == "valu":
                need = max(need, 4 if cbase in ("v_readlane_b32", "v_writelane_b32") else 2)
            if cons.cls == "vmem": need = max(need, 5)
            if cons.cls == "salu": need = max(need, 1)
    if prod.cls == "mfma":
        p = mfma_passes(prod.op)
        tbl_rw = {4: 8, 8: 12}[p]
        if cons.cls == "mfma":
            if pv & set(cons.srcab): need = max(need, tbl_rw)
            if pv & set(cons.srcc):
                if not (cons.srcc == prod.vdst and cons.op == prod.op):
                    need = max(need, {4: 6, 8: 10}[p])
            elif pv & cwrite:
                need = max(need, tbl_rw)
        elif pv & (cread | cwrite):
            need = max(need, tbl_rw)
        if cons.cls == "valu" and set(prod.srcc) & cwrite:
            need = max(need, {4: 3, 8: 7}[p])
    if prod.cls == "vmem" and prod.wide_store_data:
        if set(prod.wide_store_data) & cwrite:
            need = max(need, 2)
    if prod.cls == "salu" and 124 in prod.sdst and cons.cls == "vmem" and " lds" in cons.text:
        need = max(need, 1)
    return need

class Asm:
    def __init__(self):
        self.lines = []
        self.hist = []
    def raw(self, s):
        self.lines.append(s)
    def label(self, name):
        self.lines.append(name + ":")
        self.hist = []
        self.lines.append("  s_nop 7")
        self.lines.append("  s_nop 3")
    def label_nopad(self, name):
        self.lines.append(name + ":")
    def comment(self, s):
        self.lines.append("  ; " + s)
    def __call__(self, text):
        for t in text.strip().split("\n"):
            t = t.strip()
            if not t or t.startswith(";"):
                if t: self.lines.append("  " + t)
                continue
            ins = Ins(t)
            dist = 0
            pad = 0
            for h in reversed(self.hist):
                r = required(h, ins)
                if r > dist:
                    pad = max(pad, r - dist)
                dist += h.nop if h.cls == "nop" else 1
                if dist >= 20:
                    break
            while pad > 0:
                n = min(pad, 16)
                nop = Ins(f"s_nop {n-1}")
                self.hist.append(nop)
                self.lines.append(f"  s_nop {n-1}")
                pad -= n
            self.hist.append(ins)
            if len(self.hist) > 40:
                self.hist = self.hist[-30:]
            self.lines.append("  " + t)
    def text(self):
        return "\n".join(self.lines) + "\n"
```

```python
import sys
import asmlib

NAME = "concat_heads__mha_block_cached__sliding_block_cached__decode_kernel"
HEADER = open("concat_heads__mha_block_cached__sliding_block_cached__decode.s.ref").read().split("; @launch")[0]

WS_SIZE = 434115584
EPOCH = 0
QBOX = 4096
PBOX = 131072
PSTRIDE = 2048
OBOX = PBOX + 32 * 16 * PSTRIDE
STAMP = 400 << 20
L_QP = 0
L_QF = 8192
L_PA = 9216
L_ML = L_PA + 2 * 16 * 768
L_OB = L_ML + 256
L_OP = L_OB + 768
L_END = L_OP + 16 * 640

SC_LD = "sc1"
SC_ST = "sc1"

class Pool:
    def __init__(self, quads):
        self.free = list(quads)
    def alloc(self, allowed=None):
        for q in self.free:
            if allowed is None or q in allowed:
                self.free.remove(q)
                return q
        return None
    def release(self, q):
        self.free.append(q)
        self.free.sort()

def gen(W1=5, stamps=False, ldflav="nt", wflav="nt", spin_limit=1 << 18, xcd_group=True, poll_sleep=0):
    a = asmlib.Asm()
    a.raw(HEADER.rstrip("\n"))
    a.raw(f"; @launch grid=(256,1,1) block=(1024,1,1) lds={L_END}")
    a.raw('.amdgcn_target "amdgcn-amd-amdhsa--gfx950"')
    a.raw(".text")
    a.raw(f".globl {NAME}")
    a.raw(".p2align 8")
    a.raw(f".type {NAME},@function")
    a.raw(f"{NAME}:")
    sH, sJ, sB, sQT, sAOFF, sBOFF, sTAG, sW = "s3", "s4", "s5", "s6", "s7", "s8", "s9", "s10"
    KA, VA, KB, VB, WQ, XS, WO, WS, OUT = 44, 48, 52, 56, 60, 64, 68, 72, 76
    def srd(r): return f"s[{r}:{r+3}]"
    vTID, vL, vKV, vQA = 0, 1, 2, 3
    T0 = 4
    SC = 8
    vLA, vLB, vMA, vMB, vPL, vPH = 18, 19, 20, 21, 22, 23
    QR = 24
    ACC = 36
    POOL0 = 60
    poolq = list(range(POOL0, 128, 4))
    accq = list(range(ACC, ACC + 24, 4))
    qq = list(range(QR, QR + 12, 4))
    pool = Pool(poolq + accq)
    nonacc = set(poolq) | set(qq)

    def stamp(idx, tmpq):
        if not stamps: return
        a(f"""s_memrealtime s[96:97]
        s_waitcnt lgkmcnt(0)
        v_mov_b32 v{tmpq}, s96
        v_mov_b32 v{tmpq+1}, s97
        s_lshl_b32 s98, s2, 7
        s_add_u32 s98, s98, {STAMP + idx*8}
        v_mov_b32 v{tmpq+2}, s98
        buffer_store_dwordx2 v[{tmpq}:{tmpq+1}], v{tmpq+2}, {srd(WS)}, 0 offen""")

    a(f"""s_cmp_ge_u32 s2, 256
    s_cbranch_scc1 L_done
    s_load_dwordx16 s[16:31], s[0:1], 0
    s_load_dwordx8 s[32:39], s[0:1], 64
    s_load_dwordx2 s[40:41], s[0:1], 96""")
    if stamps:
        a("s_memrealtime s[94:95]")
    if xcd_group:
        a(f"""s_and_b32 s11, s2, 7
        s_lshr_b32 s12, s2, 3
        s_lshl_b32 s11, s11, 2
        s_lshr_b32 s13, s12, 3
        s_add_u32 {sH}, s11, s13
        s_and_b32 {sJ}, s12, 7""")
    else:
        a(f"""s_lshr_b32 {sH}, s2, 3
        s_and_b32 {sJ}, s2, 7""")
    a(f"""s_lshr_b32 {sB}, {sJ}, 2
    s_and_b32 {sQT}, {sJ}, 3
    v_and_b32 v{vL}, 63, v0
    v_lshrrev_b32 v{T0}, 6, v0
    v_readfirstlane_b32 {sW}, v{T0}
    s_lshl_b32 s11, {sB}, 5
    s_add_u32 s11, s11, {sH}
    s_mul_i32 s11, s11, 1572864
    s_mul_i32 s12, {sQT}, {1024*384}
    s_add_u32 {sAOFF}, s11, s12
    s_mul_i32 s12, {sQT}, {256*384}
    s_add_u32 {sBOFF}, s11, s12
    s_add_u32 {sBOFF}, {sBOFF}, {3072*384}
    v_lshrrev_b32 v{T0+1}, 3, v{vL}
    v_and_b32 v{T0+2}, 7, v{vL}
    v_lshlrev_b32 v{vQA}, 4, v{T0+2}
    v_mul_u32_u24 v{vKV}, 384, v{T0+1}
    v_add_u32 v{vKV}, v{vKV}, v{vQA}
    v_mul_u32_u24 v{T0+3}, 3072, v{T0}
    v_add_u32 v{vKV}, v{vKV}, v{T0+3}
    """)
    qa = pool.alloc()
    a(f"""v_mul_u32_u24 v{qa+2}, 40, v{T0}
    v_add_u32 v{qa+2}, v{qa+2}, v{T0+1}
    v_mul_u32_u24 v{qa}, 12288, v{qa+2}
    v_add_u32 v{qa}, v{qa}, v{vQA}
    v_lshlrev_b32 v{qa+1}, 1, v{qa+2}
    s_cmp_ge_u32 {sJ}, 3
    s_cselect_b32 s14, 1, 0
    s_mul_i32 s15, s14, 3
    s_sub_u32 s15, {sJ}, s15
    s_waitcnt lgkmcnt(0)""")
    def mk_srd(r, lo, hi, size):
        a(f"""s_mov_b32 s{r}, s{lo}
        s_and_b32 s{r+1}, s{hi}, 0xffff
        s_mov_b32 s{r+2}, {size}
        s_mov_b32 s{r+3}, 0x00020000""")
    a("s_load_dword s9, s[40:41], 0")
    mk_srd(KA, 18, 19, 100663296)
    a(f"""s_cmp_eq_u32 s14, 0
    s_cselect_b32 s{WQ}, s22, s32
    s_cselect_b32 s{WQ+1}, s23, s33
    s_cselect_b32 s{XS}, s16, s26
    s_cselect_b32 s{XS+1}, s17, s27
    s_and_b32 s{WQ+1}, s{WQ+1}, 0xffff
    s_mov_b32 s{WQ+2}, 7864320
    s_mov_b32 s{WQ+3}, 0x00020000
    s_and_b32 s{XS+1}, s{XS+1}, 0xffff
    s_mov_b32 s{XS+2}, 2560
    s_mov_b32 s{XS+3}, 0x00020000""")
    wqq = [pool.alloc() for _ in range(5)]
    xq = [pool.alloc() for _ in range(5)]
    a(f"""s_cmp_ge_u32 {sJ}, 6
    s_cbranch_scc1 L_noq1
    s_mul_i32 s11, {sH}, 384
    s_lshl_b32 s12, s15, 7
    s_add_u32 s11, s11, s12""")
    for n in range(5):
        a(f"buffer_load_dwordx4 v[{wqq[n]}:{wqq[n]+3}], v{qa}, {srd(WQ)}, s11 offen {wflav}")
        if n < 4:
            a(f"s_add_u32 s11, s11, {8*12288}")
    for n in range(5):
        for b in range(2):
            a(f"buffer_load_ushort v{xq[n]+b}, v{qa+1}, {srd(XS)}, 0 offen offset:{b*1280 + n*16}")
    a.label_nopad("L_noq1")
    a.hist = []

    loads = []
    for n in range(8):
        for t in range(3): loads.append(("K", KA, sAOFF, n, t))
    for n in range(2):
        for t in range(3): loads.append(("K", KB, sBOFF, n, t))
    for n in range(8):
        for t in range(3): loads.append(("V", VA, sAOFF, n, t))
    for n in range(2):
        for t in range(3): loads.append(("V", VB, sBOFF, n, t))
    for e in range(8): loads.append(("W", WO, None, e, 0))
    st = {"next": 0, "vm": 0}
    lq = {}
    lvm = {}
    vWOA = None
    def issue_one(em=None):
        em = em or a
        i = st["next"]
        if i >= len(loads): return False
        kind, sr, sb, n, t = loads[i]
        q = pool.alloc(None if kind == "K" else nonacc)
        if q is None: return False
        if kind in "KV":
            if t == 0:
                em(f"s_add_u32 s84, {sb}, {n*49152}")
            em(f"buffer_load_dwordx4 v[{q}:{q+3}], v{vKV}, {srd(sr)}, s84 offen offset:{t*128} {ldflav}")
        else:
            so = "s85" if n < 4 else "s86"
            em(f"buffer_load_dwordx4 v[{q}:{q+3}], v{vWOA}, {srd(sr)}, {so} offen offset:{(n%4)*1280} {wflav}")
        lq[i] = q
        lvm[i] = st["vm"]
        st["vm"] += 1
        st["next"] += 1
        return True
    def wait_load(i):
        n = st["vm"] - lvm[i] - 1
        assert 0 <= n < 64
        a(f"s_waitcnt vmcnt({n})")

    for _ in range(W1):
        assert issue_one()
    mk_srd(VA, 20, 21, 100663296)
    mk_srd(KB, 28, 29, 100663296)
    mk_srd(VB, 30, 31, 100663296)
    mk_srd(WS, 40, 41, WS_SIZE)
    mk_srd(OUT, 36, 37, 5120)
    a(f"""s_cmp_lt_u32 {sJ}, 4
    s_cselect_b32 s{WO}, s24, s34
    s_cselect_b32 s{WO+1}, s25, s35
    s_and_b32 s{WO+1}, s{WO+1}, 0xffff
    s_mov_b32 s{WO+2}, 7864320
    s_mov_b32 s{WO+3}, 0x00020000
    s_waitcnt lgkmcnt(0)
    s_mul_i32 {sTAG}, {sTAG}, 0x9E3779B1
    s_add_u32 {sTAG}, {sTAG}, 0x7F4A7C15""")
    cq_ = pool.alloc()
    a(f"""s_lshl_b32 s11, {sH}, 1
    s_lshr_b32 s12, {sW}, 2
    s_add_u32 s11, s11, s12
    s_lshl_b32 s11, s11, 3
    s_add_u32 s11, s11, {sJ}
    s_lshl_b32 s11, s11, 11
    s_add_u32 s11, s11, {PBOX}
    s_lshl_b32 s12, {sH}, 3
    s_add_u32 s12, s12, {sJ}
    s_mul_i32 s12, s12, 2560
    s_add_u32 s42, s12, {OBOX}
    s_cmp_lt_u32 {sW}, 8
    s_cselect_b32 s11, s11, s42
    s_movk_i32 s12, 511
    s_cselect_b32 s12, 255, s12
    v_and_b32 v{cq_+2}, s12, v0
    v_min_u32 v{cq_+2}, 319, v{cq_+2}
    v_lshlrev_b32 v{cq_+2}, 3, v{cq_+2}
    v_mov_b32 v{cq_}, 0
    s_not_b32 s13, {sTAG}
    v_mov_b32 v{cq_+1}, s13
    buffer_store_dwordx2 v[{cq_}:{cq_+1}], v{cq_+2}, {srd(WS)}, s11 offen {SC_ST}""")
    st["vm"] += 1
    if stamps:
        a(f"""s_cmp_lg_u32 {sW}, 0
        s_cbranch_scc1 L_st0
        v_mov_b32 v{cq_}, s94
        v_mov_b32 v{cq_+1}, s95
        s_lshl_b32 s98, s2, 7
        s_add_u32 s98, s98, {STAMP}
        v_mov_b32 v{cq_+2}, s98
        buffer_store_dwordx2 v[{cq_}:{cq_+1}], v{cq_+2}, {srd(WS)}, 0 offen""")
        a.label("L_st0")
    pool.release(cq_)

    qacc = [pool.alloc() for _ in range(4)]
    def QA(b, e): return qacc[b * 2 + e // 4] + e % 4
    a(f"""s_cmp_ge_u32 {sJ}, 6
    s_cbranch_scc1 L_noq2
    s_waitcnt vmcnt({st['vm']})""")
    for n in range(5):
        a(f"""v_lshlrev_b32 v{xq[n]+2}, 16, v{xq[n]}
        v_lshlrev_b32 v{xq[n]+3}, 16, v{xq[n]+1}""")
    for n in range(5):
        for b in range(2):
            for i in range(4):
                for hh in range(2):
                    d = QA(b, 2 * i + hh)
                    c = "0" if n == 0 else f"v{d}"
                    a(f"v_dot2_f32_bf16 v{d}, v{wqq[n]+i}, v{xq[n]+b+2*hh}, {c}")
    for e in range(8):
        a(f"v_permlane32_swap_b32 v{QA(0,e)}, v{QA(1,e)}")
    for e in range(8):
        a(f"v_add_f32 v{QA(0,e)}, v{QA(0,e)}, v{QA(1,e)}")
    for e in range(4):
        a(f"v_permlane16_swap_b32 v{QA(0,e)}, v{QA(0,e+4)}")
    for e in range(4):
        a(f"v_add_f32 v{QA(0,e)}, v{QA(0,e)}, v{QA(0,e+4)}")
    for e in range(4):
        a(f"v_add_f32_dpp v{QA(0,e)}, v{QA(0,e)}, v{QA(0,e)} row_ror:8 row_mask:0xf bank_mask:0xf")
    a(f"""v_lshrrev_b32 v{T0}, 5, v{vL}
    v_lshlrev_b32 v{T0}, 8, v{T0}
    v_lshl_add_u32 v{T0}, v{vQA}, 1, v{T0}
    v_and_b32 v{T0+1}, 16, v{vL}
    v_add_u32 v{T0}, v{T0}, v{T0+1}
    s_lshl_b32 s11, {sW}, 9
    v_add_u32 v{T0}, s11, v{T0}
    ds_write_b128 v{T0}, v[{QA(0,0)}:{QA(0,0)+3}] offset:{L_QP}
    s_waitcnt lgkmcnt(0)
    s_barrier
    s_cmp_lg_u32 {sW}, 0
    s_cbranch_scc1 L_noq2""")
    for q in wqq + xq + qacc + [qa]:
        pool.release(q)
    fq = [pool.alloc() for _ in range(8)]
    def FQ(w, k): return fq[w // 2] + (w % 2) * 2 + k
    a(f"v_lshlrev_b32 v{T0}, 3, v{vL}")
    for w in range(16):
        a(f"ds_read_b64 v[{FQ(w,0)}:{FQ(w,1)}], v{T0} offset:{L_QP + w*512}")
    a(f"""v_lshrrev_b32 v{T0+1}, 5, v{vL}
    v_mul_u32_u24 v{T0+1}, 1536, v{T0+1}
    v_and_b32 v{T0+2}, 31, v{vL}
    v_lshl_add_u32 v{T0+1}, v{T0+2}, 3, v{T0+1}
    s_mul_i32 s11, {sH}, 3072
    s_mul_i32 s12, s14, 768
    s_add_u32 s11, s11, s12
    s_lshl_b32 s12, s15, 8
    s_add_u32 s11, s11, s12
    s_add_u32 s11, s11, {QBOX}
    s_waitcnt lgkmcnt(0)""")
    step = 1
    while step < 16:
        for w in range(0, 16, 2 * step):
            for k in range(2):
                a(f"v_add_f32 v{FQ(w,k)}, v{FQ(w,k)}, v{FQ(w+step,k)}")
        step *= 2
    a(f"""v_cvt_pk_bf16_f32 v{T0+2}, v{FQ(0,0)}, v{FQ(0,1)}
    v_mov_b32 v{T0+3}, {sTAG}
    buffer_store_dwordx2 v[{T0+2}:{T0+3}], v{T0+1}, {srd(WS)}, s11 offen {SC_ST}""")
    stamp(1, fq[1])
    for q in fq: pool.release(q)
    a.label("L_noq2")

    POLLW = 1
    a(f"""s_cmp_eq_u32 {sW}, {POLLW}
    s_cbranch_scc1 L_poll""")
    import copy
    pf = list(pool.free)
    ptmp = pf[-3:]
    save = (copy.deepcopy(pool.free), dict(st), dict(lq), dict(lvm))
    while True:
        i = st["next"]
        kind = loads[i][0]
        if pool.free == [] or (kind != "K" and not (set(pool.free) & nonacc)):
            break
        a(f"s_waitcnt vmcnt({W1-1})")
        assert issue_one()
    a("""s_barrier
    s_branch L_qready""")
    after = (copy.deepcopy(pool.free), dict(st), dict(lq), dict(lvm))
    pool.free, st_, lq_, lvm_ = save
    st.clear(); st.update(st_); lq.clear(); lq.update(lq_); lvm.clear(); lvm.update(lvm_)
    a.label("L_poll")
    p0, p1, p2 = ptmp
    a(f"""s_setprio 3
    s_lshl_b32 s11, {sH}, 1
    s_add_u32 s11, s11, {sB}
    s_mul_i32 s11, s11, 1536
    s_add_u32 s11, s11, {QBOX}
    v_lshlrev_b32 v{p2}, 4, v{vL}
    v_and_b32 v{p2+1}, 31, v{vL}
    v_lshlrev_b32 v{p2+1}, 4, v{p2+1}
    v_add_u32 v{p2+1}, 1024, v{p2+1}
    s_mov_b32 s12, 0""")
    a.label("L_poll_loop")
    a(f"""buffer_load_dwordx4 v[{p0}:{p0+3}], v{p2}, {srd(WS)}, s11 offen {SC_LD}
    buffer_load_dwordx4 v[{p1}:{p1+3}], v{p2+1}, {srd(WS)}, s11 offen {SC_LD}
    s_add_u32 s12, s12, 1
    s_waitcnt vmcnt(0)
    v_xor_b32 v{p2+2}, {sTAG}, v{p0+1}
    v_xor_b32 v{p2+3}, {sTAG}, v{p0+3}
    v_xor_b32 v{p0+1}, {sTAG}, v{p1+1}
    v_xor_b32 v{p0+3}, {sTAG}, v{p1+3}
    v_or_b32 v{p2+2}, v{p2+2}, v{p2+3}
    v_or3_b32 v{p2+2}, v{p2+2}, v{p0+1}, v{p0+3}
    v_cmp_ne_u32 vcc, 0, v{p2+2}
    s_cmp_eq_u64 vcc, 0
    s_cbranch_scc1 L_poll_done""")
    if poll_sleep: a(f"s_sleep {poll_sleep}")
    a(f"""s_cmp_lt_u32 s12, {spin_limit}
    s_cbranch_scc1 L_poll_loop""")
    a.label("L_poll_done")
    a(f"""v_lshrrev_b32 v{p2}, 1, v{p2}
    v_lshrrev_b32 v{p2+1}, 1, v{p2+1}""")
    a(f"""v_add_u32 v{p2}, {L_QF}, v{p2}
    v_add_u32 v{p2+1}, {L_QF}, v{p2+1}
    ds_write2_b32 v{p2}, v{p0}, v{p0+2} offset0:0 offset1:1
    ds_write2_b32 v{p2+1}, v{p1}, v{p1+2} offset0:0 offset1:1
    s_waitcnt lgkmcnt(0)
    s_barrier
    s_setprio 0""")
    stamp(2, p0)
    if stamps:
        a("s_waitcnt vmcnt(0)")
    while st["next"] < after[1]["next"]:
        assert issue_one()
    assert (pool.free, st, lq, lvm) == after, "poller/non-poller state mismatch"
    a.label("L_qready")

    def read_q(p):
        for t in range(3):
            a(f"ds_read_b128 v[{QR+4*t}:{QR+4*t+3}], v{vQA} offset:{L_QF + p*384 + t*128}")
        a("s_waitcnt lgkmcnt(0)")
    def fill():
        while issue_one(): pass
    li = 0
    read_q(0)
    for blk in range(10):
        if blk == 8:
            read_q(1)
        s = SC + blk
        for t in range(3):
            wait_load(li)
            q = lq[li]
            for i in range(4):
                c = "0" if (t == 0 and i == 0) else f"v{s}"
                a(f"v_dot2_f32_bf16 v{s}, v{q+i}, v{QR+4*t+i}, {c}")
            pool.release(q)
            li += 1
            if blk == 9 and t == 2:
                for x in accq:
                    pool.free.remove(x)
                for x in qq:
                    pool.release(x)
            fill()
    for pat in ("quad_perm:[1,0,3,2]", "quad_perm:[2,3,0,1]", "row_half_mirror"):
        for blk in range(10):
            s = SC + blk
            a(f"v_add_f32_dpp v{s}, v{s}, v{s} {pat} row_mask:0xf bank_mask:0xf")
    a("s_mov_b32 s11, 0x3D93CD3A")
    a("s_mov_b32 s12, 0xffff0000")
    a("s_mov_b32 s13, 0x3FB8AA3B")
    for rnd in range(2):
        for k in range(5):
            s0, s1 = SC + 2 * k, SC + 2 * k + 1
            a(f"v_cvt_pk_bf16_f32 v{s1}, v{s0}, v{s1}")
        for k in range(5):
            s0, s1 = SC + 2 * k, SC + 2 * k + 1
            a(f"v_lshlrev_b32 v{s0}, 16, v{s1}")
            a(f"v_and_b32 v{s1}, s12, v{s1}")
        if rnd == 0:
            for blk in range(10):
                a(f"v_mul_f32 v{SC+blk}, s11, v{SC+blk}")
    a(f"""v_max3_f32 v{vMA}, v{SC}, v{SC+1}, v{SC+2}
    v_max3_f32 v{T0}, v{SC+3}, v{SC+4}, v{SC+5}
    v_max_f32 v{vMB}, v{SC+8}, v{SC+9}
    v_max3_f32 v{vMA}, v{vMA}, v{SC+6}, v{SC+7}
    v_max_f32 v{vMA}, v{vMA}, v{T0}""")
    def allreduce_r(op, regs, tmps):
        for r in regs:
            a(f"{op}_dpp v{r}, v{r}, v{r} row_ror:8 row_mask:0xf bank_mask:0xf")
        for sw in ("v_permlane16_swap_b32", "v_permlane32_swap_b32"):
            for r, t in zip(regs, tmps):
                a(f"v_mov_b32 v{t}, v{r}")
            for r, t in zip(regs, tmps):
                a(f"{sw} v{r}, v{t}")
            for r, t in zip(regs, tmps):
                a(f"{op} v{r}, v{r}, v{t}")
    allreduce_r("v_max_f32", [vMA, vMB], [T0, T0 + 1])
    for blk in range(10):
        m = vMA if blk < 8 else vMB
        a(f"v_sub_f32 v{SC+blk}, v{SC+blk}, v{m}")
    for blk in range(10):
        a(f"v_mul_f32 v{SC+blk}, s13, v{SC+blk}")
    for blk in range(10):
        a(f"v_exp_f32 v{SC+blk}, v{SC+blk}")
    a(f"""v_add_f32 v{vLA}, v{SC}, v{SC+1}
    v_add_f32 v{T0}, v{SC+2}, v{SC+3}
    v_add_f32 v{T0+1}, v{SC+4}, v{SC+5}
    v_add_f32 v{T0+2}, v{SC+6}, v{SC+7}
    v_add_f32 v{vLB}, v{SC+8}, v{SC+9}
    v_add_f32 v{vLA}, v{vLA}, v{T0}
    v_add_f32 v{T0+1}, v{T0+1}, v{T0+2}
    v_add_f32 v{vLA}, v{vLA}, v{T0+1}""")
    allreduce_r("v_add_f32", [vLA, vLB], [T0, T0 + 1])
    a(f"""s_lshl_b32 s11, {sW}, 3
    v_mov_b32 v{T0}, s11
    v_mov_b32 v{T0+2}, v{vMA}
    v_mov_b32 v{T0+3}, v{vLA}
    ds_write_b64 v{T0}, v[{T0+2}:{T0+3}] offset:{L_ML}
    v_mov_b32 v{vLA}, v{vMB}
    ds_write_b64 v{T0}, v[{vLA}:{vLB}] offset:{L_ML+128}""")
    assert vLB == vLA + 1
    vWOA = vMA
    vRED = vMB
    a(f"""v_lshrrev_b32 v{T0}, 4, v{vL}
    v_min_u32 v{T0}, 2, v{T0}
    v_mul_u32_u24 v{T0}, {8*1280}, v{T0}
    v_and_b32 v{T0+1}, 15, v{vL}
    v_min_u32 v{T0+1}, 9, v{T0+1}
    v_lshl_add_u32 v{vWOA}, v{T0+1}, 4, v{T0}
    s_and_b32 s11, {sW}, 7
    s_mul_i32 s11, s11, {24*1280}
    s_lshr_b32 s12, {sW}, 3
    s_mul_i32 s12, s12, 160
    s_add_u32 s11, s11, s12
    s_mul_i32 s12, {sH}, {192*1280}
    s_add_u32 s11, s11, s12
    s_mul_i32 s12, {sQT}, 320
    s_add_u32 s85, s11, s12
    s_add_u32 s86, s85, 5120""")
    a(f"""v_lshrrev_b32 v{T0}, 5, v{vL}
    v_lshlrev_b32 v{T0}, 4, v{T0}
    v_lshl_add_u32 v{T0}, v{vQA}, 1, v{T0}
    v_bfe_u32 v{T0+1}, v{vL}, 4, 1
    v_lshl_add_u32 v{T0}, v{T0+1}, 3, v{T0}
    s_mul_i32 s11, {sW}, 768
    v_add_u32 v{vRED}, s11, v{T0}""")
    assert st["next"] <= 60, "W loads issued before address ready"
    def AC(t, e): return ACC + t * 8 + e
    def reduce_write(p):
        for t in range(3):
            for e in range(4):
                a(f"v_permlane32_swap_b32 v{AC(t,e)}, v{AC(t,e+4)}")
        for t in range(3):
            for e in range(4):
                a(f"v_add_f32 v{AC(t,e)}, v{AC(t,e)}, v{AC(t,e+4)}")
        for t in range(3):
            for e in range(2):
                a(f"v_permlane16_swap_b32 v{AC(t,e)}, v{AC(t,e+2)}")
        for t in range(3):
            for e in range(2):
                a(f"v_add_f32 v{AC(t,e)}, v{AC(t,e)}, v{AC(t,e+2)}")
        for t in range(3):
            for e in range(2):
                a(f"v_add_f32_dpp v{AC(t,e)}, v{AC(t,e)}, v{AC(t,e)} row_ror:8 row_mask:0xf bank_mask:0xf")
        for t in range(3):
            a(f"ds_write_b64 v{vRED}, v[{AC(t,0)}:{AC(t,1)}] offset:{L_PA + p*12288 + t*256}")
    for blk in range(10):
        first = blk in (0, 8)
        a(f"""v_cvt_pk_bf16_f32 v{vPL}, v{SC+blk}, 0
        v_cvt_pk_bf16_f32 v{vPH}, 0, v{SC+blk}""")
        for t in range(3):
            wait_load(li)
            q = lq[li]
            for i in range(4):
                for hh in range(2):
                    d = AC(t, 2 * i + hh)
                    c = "0" if first else f"v{d}"
                    a(f"v_dot2_f32_bf16 v{d}, v{q+i}, v{vPH if hh else vPL}, {c}")
            pool.release(q)
            li += 1
            fill()
        if blk == 7:
            reduce_write(0)
            a("s_waitcnt lgkmcnt(0)")
        if blk == 9:
            reduce_write(1)
    assert st["next"] == len(loads)
    wq_ = [lq[60 + e] for e in range(8)]
    a("""s_waitcnt lgkmcnt(0)
    s_barrier""")
    for x in accq: pool.release(x)
    if stamps:
        a(f"""s_cmp_lg_u32 {sW}, 0
        s_cbranch_scc1 L_st3""")
        stamp(3, T0)
        a.label("L_st3")
    a(f"""s_cmp_ge_u32 {sW}, 13
    s_cbranch_scc1 L_gather
    s_cmp_ge_u32 {sW}, 6
    s_cbranch_scc1 L_perm""")
    fs = list(pool.free)
    cA = fs[0:4]
    def CA(w): return cA[w // 4] + w % 4
    cm = fs[4]
    ct = fs[5]
    a(f"""s_cmp_ge_u32 {sW}, 3
    s_cselect_b32 s11, 1, 0
    s_mul_i32 s12, s11, 3
    s_sub_u32 s12, {sW}, s12
    v_and_b32 v{ct}, 15, v{vL}
    v_lshlrev_b32 v{ct}, 3, v{ct}
    s_lshl_b32 s13, s11, 7
    v_add_u32 v{ct}, s13, v{ct}
    ds_read_b64 v[{cm}:{cm+1}], v{ct} offset:{L_ML}
    s_lshl_b32 s13, s12, 6
    v_add_u32 v{ct+1}, s13, v{vL}
    v_lshlrev_b32 v{ct+2}, 2, v{ct+1}
    s_mul_i32 s13, s11, 12288
    v_add_u32 v{ct+2}, s13, v{ct+2}""")
    for w in range(16):
        a(f"ds_read_b32 v{CA(w)}, v{ct+2} offset:{L_PA + w*768}")
    a(f"""s_lshl_b32 s13, {sH}, 1
    s_add_u32 s13, s13, s11
    s_lshl_b32 s13, s13, 3
    s_add_u32 s13, s13, {sJ}
    s_lshl_b32 s13, s13, 11
    s_add_u32 s13, s13, {PBOX}
    v_lshlrev_b32 v{ct+1}, 3, v{ct+1}
    s_mov_b32 s14, 0x3FB8AA3B
    s_waitcnt lgkmcnt(15)
    v_mov_b32 v{cm+2}, v{cm}""")
    for pat in ("quad_perm:[1,0,3,2]", "quad_perm:[2,3,0,1]", "row_half_mirror", "row_mirror"):
        a(f"v_max_f32_dpp v{cm+2}, v{cm+2}, v{cm+2} {pat} row_mask:0xf bank_mask:0xf")
    a(f"""v_sub_f32 v{cm}, v{cm}, v{cm+2}
    v_mul_f32 v{cm}, s14, v{cm}
    v_exp_f32 v{cm}, v{cm}
    v_mul_f32 v{cm+1}, v{cm}, v{cm+1}""")
    for w in range(16):
        a(f"v_readlane_b32 s{80+w}, v{cm}, {w}")
    for pat in ("quad_perm:[1,0,3,2]", "quad_perm:[2,3,0,1]", "row_half_mirror", "row_mirror"):
        a(f"v_add_f32_dpp v{cm+1}, v{cm+1}, v{cm+1} {pat} row_mask:0xf bank_mask:0xf")
    a("s_waitcnt lgkmcnt(0)")
    a(f"v_mul_f32 v{ct+2}, s80, v{CA(0)}")
    a(f"v_mul_f32 v{ct+3}, s81, v{CA(1)}")
    for w in range(2, 16):
        a(f"v_fmac_f32 v{ct+2+(w&1)}, s{80+w}, v{CA(w)}")
    a(f"""v_add_f32 v{ct+2}, v{ct+2}, v{ct+3}
    v_mov_b32 v{ct+3}, {sTAG}
    buffer_store_dwordx2 v[{ct+2}:{ct+3}], v{ct+1}, {srd(WS)}, s13 offen {SC_ST}
    s_cmp_lg_u32 s12, 0
    s_cbranch_scc1 L_c1
    v_mov_b32 v{cA[0]}, v{cm+2}
    v_mov_b32 v{cA[0]+1}, {sTAG}
    v_mov_b32 v{cA[0]+2}, v{cm+1}
    v_mov_b32 v{cA[0]+3}, {sTAG}
    v_mov_b32 v{ct}, 1536
    s_mov_b64 exec, 1
    buffer_store_dwordx4 v[{cA[0]}:{cA[0]+3}], v{ct}, {srd(WS)}, s13 offen {SC_ST}
    s_mov_b64 exec, -1
    s_waitcnt vmcnt(2)
    s_branch L_perm2""")
    a.label_nopad("L_c1")
    a("""s_waitcnt vmcnt(1)
    s_branch L_perm2""")
    a.label("L_gather")
    gA = fs[0:4]
    gM = fs[4:8]
    gt = fs[8]
    gu = fs[9]
    a(f"""s_sub_u32 s11, {sW}, 13
    s_lshl_b32 s11, s11, 6
    v_add_u32 v{gt}, s11, v{vL}
    v_cmp_le_u32 vcc, 96, v{gt}
    v_cndmask_b32 v{gt+1}, 0, 1, vcc
    v_mul_u32_u24 v{gt+2}, 96, v{gt+1}
    v_sub_u32 v{gt+2}, v{gt}, v{gt+2}
    v_lshlrev_b32 v{gu+3}, 2, v{gt}
    v_lshlrev_b32 v{gt+3}, 13, v{gt+1}
    v_lshl_add_u32 v{gt}, v{gt+2}, 4, v{gt+3}
    v_add_u32 v{gt+1}, 4096, v{gt}
    v_add_u32 v{gt+2}, 1536, v{gt+3}
    v_add_u32 v{gt+3}, 4096, v{gt+2}
    s_lshl_b32 s13, {sH}, 1
    s_add_u32 s13, s13, {sB}
    s_lshl_b32 s13, s13, 14
    s_add_u32 s13, s13, {PBOX}
    s_mov_b32 s12, 0
    s_mov_b32 s14, 0x3FB8AA3B""")
    a.label("L_gather_loop")
    for q in range(4):
        a(f"buffer_load_dwordx4 v[{gA[q]}:{gA[q]+3}], v{gt + q//2}, {srd(WS)}, s13 offen offset:{(q%2)*2048} {SC_LD}")
    for q in range(4):
        a(f"buffer_load_dwordx4 v[{gM[q]}:{gM[q]+3}], v{gt + 2 + q//2}, {srd(WS)}, s13 offen offset:{(q%2)*2048} {SC_LD}")
    a("""s_add_u32 s12, s12, 1
    s_waitcnt vmcnt(0)""")
    tags = [g + k for g in gA + gM for k in (1, 3)]
    a(f"v_xor_b32 v{gu}, {sTAG}, v{tags[0]}")
    for i in range(1, 16):
        a(f"v_xor_b32 v{tags[i]}, {sTAG}, v{tags[i]}")
    for i in range(1, 15, 2):
        a(f"v_or3_b32 v{gu}, v{gu}, v{tags[i]}, v{tags[i+1]}")
    a(f"""v_or_b32 v{gu}, v{gu}, v{tags[15]}
    v_cmp_ne_u32 vcc, 0, v{gu}
    s_cmp_eq_u64 vcc, 0
    s_cbranch_scc1 L_gather_done""")
    if poll_sleep: a(f"s_sleep {poll_sleep}")
    a(f"""s_cmp_lt_u32 s12, {spin_limit}
    s_cbranch_scc1 L_gather_loop""")
    a.label("L_gather_done")
    a(f"""v_max3_f32 v{gu}, v{gM[0]}, v{gM[1]}, v{gM[2]}
    v_max_f32 v{gu}, v{gu}, v{gM[3]}""")
    for q in range(4):
        a(f"v_sub_f32 v{gM[q]}, v{gM[q]}, v{gu}")
    for q in range(4):
        a(f"v_mul_f32 v{gM[q]}, s14, v{gM[q]}")
    for q in range(4):
        a(f"v_exp_f32 v{gM[q]}, v{gM[q]}")
    a(f"""v_mul_f32 v{gu}, v{gM[0]}, v{gM[0]+2}
    v_mul_f32 v{gu+1}, v{gM[0]}, v{gA[0]}
    v_mul_f32 v{gu+2}, v{gM[0]}, v{gA[0]+2}""")
    for q in range(1, 4):
        a(f"""v_fmac_f32 v{gu}, v{gM[q]}, v{gM[q]+2}
        v_fmac_f32 v{gu+1}, v{gM[q]}, v{gA[q]}
        v_fmac_f32 v{gu+2}, v{gM[q]}, v{gA[q]+2}""")
    a(f"""v_rcp_f32 v{gu}, v{gu}
    v_mul_f32 v{gu+1}, v{gu+1}, v{gu}
    v_mul_f32 v{gu+2}, v{gu+2}, v{gu}
    v_cvt_pk_bf16_f32 v{gu+1}, v{gu+1}, v{gu+2}
    ds_write_b32 v{gu+3}, v{gu+1} offset:{L_OB}""")
    if stamps:
        a(f"""s_cmp_lg_u32 {sW}, 13
        s_cbranch_scc1 L_perm""")
        stamp(4, gA[0])
    a.label_nopad("L_perm")
    a.hist = []
    a("s_waitcnt vmcnt(0)")
    a.label("L_perm2")
    bq = fs[0:8]
    assert len(fs) >= 8 + 8 + 2, len(fs)
    dq = fs[8:16]
    aq = fs[16]
    at = fs[17]
    a(f"""s_mov_b32 s11, 0x05040100
    s_mov_b32 s12, 0x07060302""")
    for jc in range(8):
        i = jc // 2
        sel = "s12" if jc % 2 else "s11"
        for k2 in range(4):
            a(f"v_perm_b32 v{bq[jc]+k2}, v{wq_[2*k2+1]+i}, v{wq_[2*k2]+i}, {sel}")
    a(f"""v_and_b32 v{at}, 1, v{vL}
    v_mul_u32_u24 v{at}, 384, v{at}
    v_lshrrev_b32 v{at+1}, 4, v{vL}
    v_lshl_add_u32 v{at}, v{at+1}, 4, v{at}
    s_and_b32 s11, {sW}, 7
    s_mul_i32 s11, s11, 48
    v_add_u32 v{at}, s11, v{at}
    v_lshlrev_b32 v{at+1}, 5, v{vL}
    s_mul_i32 s11, {sW}, 640
    s_add_u32 s11, s11, {L_OP}
    v_add_u32 v{at+1}, s11, v{at+1}
    v_mov_b32 v{aq}, 0
    v_mov_b32 v{aq+1}, 0
    v_mov_b32 v{aq+2}, 0
    v_mov_b32 v{aq+3}, 0""")
    a(f"""v_cmp_le_u32 vcc, 160, v0
    v_cndmask_b32 v{at+2}, 0, 1, vcc
    v_mul_u32_u24 v{at+3}, 160, v{at+2}
    v_sub_u32 v{at+3}, v0, v{at+3}
    v_mul_u32_u24 v{at+2}, 320, v{at+2}
    v_cmp_le_u32 vcc, 80, v{at+3}
    v_cndmask_b32 v{T0}, 0, 1, vcc
    v_mul_u32_u24 v{T0}, {8*640 - 320}, v{T0}
    v_lshl_add_u32 v{at+2}, v{at+3}, 2, v{at+2}
    v_add_u32 v{at+2}, v{at+2}, v{T0}
    v_lshlrev_b32 v{at+3}, 3, v0
    s_waitcnt lgkmcnt(0)
    s_barrier
    s_mov_b32 exec_hi, 0xffff
    ds_read_b128 v[{aq}:{aq+3}], v{at} offset:{L_OB}
    s_mov_b32 exec_hi, -1
    s_waitcnt lgkmcnt(0)""")
    for jc in range(8):
        a(f"v_mfma_f32_16x16x32_bf16 v[{dq[jc]}:{dq[jc]+3}], v[{aq}:{aq+3}], v[{bq[jc]}:{bq[jc]+3}], 0")
    a("s_mov_b64 exec, 0x3ff")
    for jc in range(8):
        a(f"ds_write2_b32 v{at+1}, v{dq[jc]}, v{dq[jc]+1} offset0:{jc} offset1:{80+jc}")
    a(f"""s_mov_b64 exec, -1
    s_waitcnt lgkmcnt(0)
    s_barrier
    s_cmp_eq_u32 {sW}, 15
    s_cbranch_scc1 L_final
    s_cmp_ge_u32 {sW}, 5
    s_cbranch_scc1 L_done""")
    for s8 in range(8):
        a(f"ds_read_b32 v{dq[s8//4] + s8%4}, v{at+2} offset:{L_OP + s8*640}")
    d0 = dq[0]; d1 = dq[1]
    a(f"""s_waitcnt lgkmcnt(0)
    v_add_f32 v{d0}, v{d0}, v{d0+1}
    v_add_f32 v{d0+2}, v{d0+2}, v{d0+3}
    v_add_f32 v{d1}, v{d1}, v{d1+1}
    v_add_f32 v{d1+2}, v{d1+2}, v{d1+3}
    v_add_f32 v{d0}, v{d0}, v{d0+2}
    v_add_f32 v{d1}, v{d1}, v{d1+2}
    v_add_f32 v{d0}, v{d0}, v{d1}
    v_mov_b32 v{d0+1}, {sTAG}
    buffer_store_dwordx2 v[{d0}:{d0+1}], v{at+3}, {srd(WS)}, s42 offen {SC_ST}""")
    if stamps:
        a(f"""s_cmp_lg_u32 {sW}, 0
        s_cbranch_scc1 L_done""")
        stamp(5, dq[2])
    a("s_endpgm")
    a.label("L_final")
    r = [dq[0], dq[0] + 2, dq[1], dq[1] + 2, dq[2]]
    ft = dq[3]
    tm = dq[4]; tm2 = dq[5]
    a(f"""v_and_b32 v{ft}, 31, v{vL}
    v_mul_u32_u24 v{ft}, {8*2560}, v{ft}
    v_lshrrev_b32 v{ft+1}, 5, v{vL}
    v_mul_u32_u24 v{ft+2}, 40, v{ft+1}
    v_add_u32 v{ft}, v{ft}, v{ft+2}
    s_mul_i32 s11, {sJ}, 2560
    s_mul_i32 s12, {sH}, 80
    s_add_u32 s11, s11, s12
    s_add_u32 s11, s11, {OBOX}
    v_mul_u32_u24 v{ft+1}, 10, v{ft+1}
    s_mov_b32 s12, 0""")
    a.label("L_final_loop")
    for k in range(5):
        a(f"buffer_load_dwordx2 v[{r[k]}:{r[k]+1}], v{ft}, {srd(WS)}, s11 offen offset:{k*8} {SC_LD}")
    a(f"""s_add_u32 s12, s12, 1
    s_waitcnt vmcnt(0)""")
    for k in range(5):
        a(f"v_xor_b32 v{r[k]+1}, {sTAG}, v{r[k]+1}")
    a(f"""v_or3_b32 v{ft+2}, v{r[0]+1}, v{r[1]+1}, v{r[2]+1}
    v_or3_b32 v{ft+2}, v{ft+2}, v{r[3]+1}, v{r[4]+1}
    v_cmp_ne_u32 vcc, 0, v{ft+2}
    s_cmp_eq_u64 vcc, 0
    s_cbranch_scc1 L_final_done""")
    if poll_sleep: a(f"s_sleep {poll_sleep}")
    a(f"""s_cmp_lt_u32 s12, {spin_limit}
    s_cbranch_scc1 L_final_loop""")
    a.label("L_final_done")
    for pat in ("quad_perm:[1,0,3,2]", "quad_perm:[2,3,0,1]", "row_half_mirror", "row_mirror"):
        for k in range(5):
            a(f"v_add_f32_dpp v{r[k]}, v{r[k]}, v{r[k]} {pat} row_mask:0xf bank_mask:0xf")
    for k in range(5):
        a(f"v_mov_b32 v{r[k]+1}, v{r[k]}")
    for k in range(5):
        a(f"v_permlane16_swap_b32 v{r[k]}, v{r[k]+1}")
    for k in range(5):
        a(f"v_add_f32 v{r[k]}, v{r[k]}, v{r[k]+1}")
    for k in range(5):
        a(f"v_cvt_pk_bf16_f32 v{r[k]}, v{r[k]}, v{r[k]}")
    a(f"""s_lshr_b32 s11, {sH}, 4
    s_mul_i32 s11, s11, 1120
    s_mul_i32 s12, {sB}, 640
    s_add_u32 s11, s11, s12
    s_mul_i32 s12, {sQT}, 160
    s_add_u32 s11, s11, s12
    s_mul_i32 s12, {sH}, 10
    s_add_u32 s11, s11, s12
    s_lshl_b32 s11, s11, 1
    s_mov_b32 exec_lo, 1
    s_mov_b32 exec_hi, 1""")
    for k in range(5):
        a(f"buffer_store_short v{r[k]}, v{ft+1}, {srd(OUT)}, s11 offen offset:{k*2}")
    a(f"""s_mov_b64 exec, 1
    s_or_b32 s11, {sH}, {sJ}
    s_cmp_lg_u32 s11, 0
    s_cbranch_scc1 L_noepoch
    v_mov_b32 v{ft}, 0
    v_mov_b32 v{ft+2}, {sTAG}
    buffer_store_dword v{ft+2}, v{ft}, {srd(WS)}, 0 offen""")
    a.label("L_noepoch")
    stamp(6, tm)
    a.label_nopad("L_done")
    a("s_endpgm")
    a.raw(f""".section .rodata,"a"
.p2align 6
.amdhsa_kernel {NAME}
  .amdhsa_next_free_vgpr 128
  .amdhsa_next_free_sgpr 102
  .amdhsa_accum_offset 128
  .amdhsa_group_segment_fixed_size 0
  .amdhsa_kernarg_size 104
  .amdhsa_user_sgpr_count 2
  .amdhsa_user_sgpr_kernarg_segment_ptr 1
  .amdhsa_system_sgpr_workgroup_id_x 1
.end_amdhsa_kernel""")
    return a.text()

if __name__ == "__main__":
    import build
    open("f1.s", "w").write(gen())
    print(build.build("f1.s"))
    open("f1s.s", "w").write(gen(stamps=True))
    print(build.build("f1s.s"))
```
